```python
import torch

def _softmax(x, axis=-1):
    return torch.softmax(x, dim=axis)
def _gelu(x):
    return torch.nn.functional.gelu(x, approximate="tanh")
def _silu(x):
    return torch.nn.functional.silu(x)
def _sigmoid(x):
    return torch.sigmoid(x)
def _layernorm(x, axis=-1, eps=1e-5):
    m = x.mean(dim=axis, keepdim=True)
    v = x.var(dim=axis, keepdim=True, unbiased=False)
    return (x - m) / torch.sqrt(v + eps)
def _scatter_add(tgt, idx, src, axis=0):
    return tgt.clone().index_add_(axis, idx, src)
def _segment_sum(src, seg, n):
    out = torch.zeros((n,) + src.shape[1:], dtype=src.dtype)
    return out.index_add_(0, seg, src)
def _pad(x, pw):
    flat = tuple(v for pair in reversed(pw) for v in pair)
    return torch.nn.functional.pad(x, flat)

kernel_name = 'parallel_sum__ssm_conv_s4d__dense_activation_relu__prompt'

def setup_inputs():

    _w = (lambda a: (lambda t: t.to(torch.bfloat16) if t.is_floating_point() else t)(torch.as_tensor(a)))
    def _A_setup():
        Bsz, L, D, N = 1, 2048, 512, 128
        return {
            "u": _w((lambda *s: torch.randn(*s, dtype=torch.bfloat16) * 0.05)(Bsz, L, D)),
            "log_A_real": _w((lambda *s: torch.randn(*s, dtype=torch.bfloat16) * 6.4)(D, N) * 0.5),
            "A_imag": _w((lambda *s: torch.randn(*s, dtype=torch.bfloat16) * 0.1)(D, N) * 3.14),
            "C_real": _w((lambda *s: torch.randn(*s, dtype=torch.bfloat16) * 0.8)(D, N) / N ** 0.5),
            "C_imag": _w((lambda *s: torch.randn(*s, dtype=torch.bfloat16) * 0.8)(D, N) / N ** 0.5),
            "log_dt": _w((lambda *s: torch.randn(*s, dtype=torch.bfloat16) * 0.1)(D) * 0.5 - 4.0),
            "D_skip": _w((lambda *s: torch.randn(*s, dtype=torch.bfloat16) * 0.1)(D)),
        }
    _A_in = _A_setup()

    def _B_setup():
        B, S, D, Dff = 1, 2048, 512, 1376
        return {
            "x": _w((lambda *s: torch.randn(*s, dtype=torch.bfloat16) * 0.05)(B, S, D)),
            "w1": _w((lambda *s: torch.randn(*s, dtype=torch.bfloat16) * 0.05)(D, Dff)),
            "w2": _w((lambda *s: torch.randn(*s, dtype=torch.bfloat16) * 0.05)(Dff, D)),
        }
    _B_in = _B_setup()

    return {
        "A_u": _A_in["u"],
        "A_log_A_real": _A_in["log_A_real"],
        "A_A_imag": _A_in["A_imag"],
        "A_C_real": _A_in["C_real"],
        "A_C_imag": _A_in["C_imag"],
        "A_log_dt": _A_in["log_dt"],
        "A_D_skip": _A_in["D_skip"],
        "B_x": _B_in["x"],
        "B_w1": _B_in["w1"],
        "B_w2": _B_in["w2"],
    }

def reference(A_u, A_log_A_real, A_A_imag, A_C_real, A_C_imag, A_log_dt, A_D_skip, B_x, B_w1, B_w2):
    def _A_ref(u, log_A_real, A_imag, C_real, C_imag, log_dt, D_skip):
        L = u.shape[1]
        dt = torch.exp(log_dt)
        A = -torch.exp(log_A_real) + 1j * A_imag
        C = (C_real + 1j * C_imag) * dt[:, None]
        pos = (lambda x, dt: x.to(dt))(torch.arange(L), log_dt.dtype)
        P = torch.exp((A * dt[:, None])[:, :, None] * pos[None, None, :])
        K = 2.0 * torch.einsum("dn,dnl->dl", C, P).real
        L2 = 2 * L
        u_t = (lambda x, *d: x.permute(*d))(u, 0, 2, 1)
        Kf = (lambda x, *a, **k: torch.fft.rfft(x.float(), *a, **k))(K, L2)
        Uf = (lambda x, *a, **k: torch.fft.rfft(x.float(), *a, **k))(u_t, L2)
        y = (lambda x, *a, **k: torch.fft.irfft(x, *a, **k).to(torch.bfloat16))(Uf * Kf[None, :, :], L2)[:, :, :L]
        y = (lambda x, *d: x.permute(*d))(y, 0, 2, 1)
        return y + u * D_skip[None, None, :]

    def _B_ref(x, w1, w2):
        h = torch.einsum("bsd,df->bsf", x, w1)
        zero = torch.zeros_like(h)
        h = torch.maximum(h, zero)
        return torch.einsum("bsf,fd->bsd", h, w2)

    x = A_u
    xn = _layernorm(x, axis=-1)
    return x + _A_ref(xn, A_log_A_real, A_A_imag, A_C_real, A_C_imag, A_log_dt, A_D_skip) + _B_ref(xn, B_w1, B_w2)
```

```python
import re
TRANS = ('v_exp_f32','v_log_f32','v_rcp_f32','v_rsq_f32','v_sqrt_f32','v_sin_f32','v_cos_f32')
def regs(tok):
    tok = tok.strip()
    tok = tok.lstrip('-')
    m = re.fullmatch(r'abs\((.*)\)|\|(.*)\|', tok)
    if m: tok = m.group(1) or m.group(2)
    m = re.fullmatch(r'([vs])(\d+)', tok)
    if m: return [(m.group(1), int(m.group(2)))]
    m = re.fullmatch(r'([vs])\[(\d+):(\d+)\]', tok)
    if m: return [(m.group(1), i) for i in range(int(m.group(2)), int(m.group(3))+1)]
    if tok == 'vcc': return [('s','vcc_lo'),('s','vcc_hi')]
    if tok in ('vcc_lo','vcc_hi'): return [('s',tok)]
    if tok == 'm0': return [('x','m0')]
    if tok == 'exec': return [('x','exec')]
    return []
def split_ops(rest):
    ops=[]; depth=0; cur=''
    for ch in rest:
        if ch in '[(': depth+=1
        if ch in '])': depth-=1
        if ch==',' and depth==0: ops.append(cur.strip()); cur=''
        else: cur+=ch
    if cur.strip(): ops.append(cur.strip())
    mods=''
    if ops:
        parts = ops[-1].split(None,1)
        ops[-1]=parts[0]
        if len(parts)>1: mods=parts[1]
    return ops, mods
class Asm:
    def __init__(self):
        self.lines=[]; self.t=0; self.ev={}
        self.saved={}; self.nnop=0; self.ninst=0
    def raw(self, s): self.lines.append(s)
    def c(self, s): self.lines.append('  ; '+s)
    def _ages(self): return {k:(self.t-v[0], v[1]) for k,v in self.ev.items() if self.t-v[0] < 24}
    def label(self, name):
        ages = self._ages() if not getattr(self,'dead',False) else {}
        for st in self.saved.get(name, []):
            for k,(a,x) in st.items():
                if k not in ages or a < ages[k][0]: ages[k]=(a,x)
        self.ev = {k:(self.t-a, x) for k,(a,x) in ages.items()}
        self.dead=False
        self.lines.append(name+':')
    def __call__(self, text):
        for ln in text.strip().split('\n'):
            ln = ln.split(';')[0].strip()
            if not ln: continue
            if ln.endswith(':'): self.label(ln[:-1]); continue
            self.inst(ln)
    def need(self, key, ws):
        if key in self.ev:
            gap = self.t - self.ev[key][0] - 1
            if ws - gap > self._need: self._need = ws-gap
    def inst(self, ln):
        parts = ln.split(None,1); op = parts[0]; rest = parts[1] if len(parts)>1 else ''
        ops, mods = split_ops(rest)
        R = [regs(o) for o in ops]
        flat = lambda L: [r for x in L for r in x]
        self._need = 0
        post = []
        if op == 's_nop':
            self.lines.append('  '+ln); self.t += int(ops[0])+1; return
        if op.startswith('v_pk_'):
            m = re.search(r'op_sel:\[(\d),(\d)', mods)
            assert not (m and m.group(2)=='1'), 'src1 op_sel=1 on packed op is corrupted by a following MFMA: '+ln
        isv = op.startswith('v_'); mf = op.startswith('v_mfma')
        dst=[]; src=[]
        if mf:
            passes = 8 if '32x32' in op else 4
            D,A,B,C = R[0],R[1],R[2],R[3]
            for r in A+B+C:
                self.need(('vw',r),2); self.need(('dot',r),3)
            for r in A+B:
                if ('mw',r) in self.ev: self.need(('mw',r), 12 if self.ev[('mw',r)][1][0]==8 else 8)
            for r in C:
                if ('mw',r) in self.ev:
                    p,rng = self.ev[('mw',r)][1]
                    if not (rng==tuple(C) and p==passes): self.need(('mw',r), 10 if p==8 else 6)
            for r in D:
                if ('mw',r) in self.ev and r not in C:
                    p,rng = self.ev[('mw',r)][1]
                    self.need(('mw',r), 10 if p==8 else 6)
            for r in D: post.append((('mw',r),(passes,tuple(D))))
            for r in C: post.append((('mc',r),passes))
            for r in D: self.ev.pop(('vw',r),None)
        elif isv:
            dpp = ('_dpp' in op) or ('quad_perm' in mods) or ('row_' in mods)
            if op.startswith('v_permlane'):
                dst=R[0]+R[1]; src=R[0]+R[1]
                for r in src: self.need(('vw',r),2)
            elif op.startswith('v_readlane') or op.startswith('v_readfirstlane'):
                dst=R[0]; src=flat(R[1:])
                for r in R[1]: self.need(('vw',r),1)
                if len(R)>2:
                    for r in R[2]: self.need(('sw',r),4)
            else:
                dst=R[0]; src=flat(R[1:])
                if op.startswith(('v_fmac','v_dot2c','v_writelane')): src=src+dst
            for r in src:
                if r[0]=='s': self.need(('sw',r),2)
                if r[0]=='v':
                    if dpp: self.need(('vw',r),2)
                    if op.split('_e')[0] not in TRANS: self.need(('tw',r),1)
                    if ('dot',r) in self.ev:
                        if not (self.ev[('dot',r)][1]==op and r in dst and r in R[-1]+ (R[0] if 'dot2c' in op else []) and r not in R[1]+R[2]): self.need(('dot',r),3)
            for r in src+dst:
                if r[0]=='v' and ('mw',r) in self.ev: self.need(('mw',r), 12 if self.ev[('mw',r)][1][0]==8 else 8)
            for r in dst:
                if r[0]=='v':
                    if ('mc',r) in self.ev: self.need(('mc',r), 7 if self.ev[('mc',r)][1]==8 else 3)
                    self.need(('st',r),2)
                    if ('dot',r) in self.ev and self.ev[('dot',r)][1]!=op: self.need(('dot',r),3)
                    post.append((('vw',r),None))
                    if op in TRANS: post.append((('tw',r),None))
                    else: self.ev.pop(('tw',r),None)
                    if op.startswith('v_dot'): post.append((('dot',r),op))
                elif r[0]=='s': post.append((('sw',r),None))
        elif op.startswith(('ds_','buffer_','global_')):
            lds = op.startswith('buffer_load') and re.search(r'\blds\b', mods) is not None
            if op.startswith('ds_read') or '_rtn' in op or op.startswith(('ds_bpermute','ds_swizzle')): dst=R[0]; src=flat(R[1:])
            elif op.startswith('ds_'): src=flat(R)
            elif lds: src=flat(R); self.need(('m0',),1)
            elif '_load' in op: dst=R[0]; src=flat(R[1:])
            else:
                src=flat(R)
                data = R[0] if op.startswith('buffer') else R[1]
                if len(data)>=3:
                    for r in data: post.append((('st',r),None))
            for r in src:
                if r[0]=='s' and not op.startswith('ds_'): self.need(('sw',r),5)
                if r[0]=='v': self.need(('tw',r),1); self.need(('dot',r),3)
            for r in src+dst:
                if r[0]=='v' and ('mw',r) in self.ev: self.need(('mw',r), 12 if self.ev[('mw',r)][1][0]==8 else 8)
            for r in dst:
                if ('mc',r) in self.ev: self.need(('mc',r), 7 if self.ev[('mc',r)][1]==8 else 3)
                self.need(('st',r),1)
        else:
            if ops and R and ('x','m0') in R[0] and op.startswith('s_') and not op.startswith('s_cmp'): post.append((('m0',),None))
            if op.startswith('s_') and R and not op.startswith(('s_cmp','s_cbranch','s_branch','s_waitcnt','s_bitcmp')):
                for r in R[0]: self.ev.pop(('sw',r),None)
        n = self._need
        if n>0:
            self.lines.append(f'  s_nop {n-1}'); self.t += n; self.nnop += n
        self.lines.append('  '+ln); self.ninst += 1
        for k,x in post: self.ev[k]=(self.t,x)
        self.t += 1
        if op.startswith(('s_cbranch','s_branch')):
            self.saved.setdefault(ops[0],[]).append(self._ages())
            if op=='s_branch': self.dead=True
        if op=='s_endpgm': self.dead=True
    def text(self): return '\n'.join(self.lines)+'\n'
def v(a,n=1): return f'v{a}' if n==1 else f'v[{a}:{a+n-1}]'
def s(a,n=1): return f's{a}' if n==1 else f's[{a}:{a+n-1}]'
```

```python
NAME='parallel_sum__ssm_conv_s4d__dense_activation_relu__prompt'
def kernel_file(launch_lines, kernels):
    s = ''.join(l+'\n' for l in launch_lines)
    s += '.amdgcn_target "amdgcn-amd-amdhsa--gfx950"\n.text\n'
    for label, body, vg, acc, sg in kernels:
        s += f'.globl {label}\n.p2align 8\n.type {label},@function\n{label}:\n{body}\n'
    s += '.section .rodata,"a"\n'
    for label, body, vg, acc, sg in kernels:
        s += f'''.p2align 6
.amdhsa_kernel {label}
  .amdhsa_next_free_vgpr {vg}
  .amdhsa_next_free_sgpr {sg}
  .amdhsa_accum_offset {acc}
  .amdhsa_group_segment_fixed_size 0
  .amdhsa_kernarg_size 104
  .amdhsa_user_sgpr_count 2
  .amdhsa_user_sgpr_kernarg_segment_ptr 1
  .amdhsa_system_sgpr_workgroup_id_x 1
  .amdhsa_float_denorm_mode_32 3
.end_amdhsa_kernel
'''
    return s
```

```python
import sys
from asmlib import *
from hdr import *
class O: pass
opt = O(); opt.instr = False; opt.out = 'k1.s'
for a in sys.argv[1:]:
    if a == '-i': opt.instr = True
    elif a.startswith('-o'): opt.out = a[2:]
    elif '=' in a:
        k,val = a.split('='); setattr(opt,k,int(val))
def P(name, default): return getattr(opt, name, default)

XNT=0; XNF=2<<20; H=4<<20; HST=86*1024; A2=10<<20; FL=12<<20; FL_X=FL; FL_H=FL+4096; FL_A=FL+8192
WS_REC=13<<20; STAMP=128<<20
C_LN,C_K1,C_K2,C_CV,C_W1,C_W1D = 0,4,12,16,20,24
XA=128; XST=4608; KC=XA+2*XST; KCO=4160; KST=8320; RB=KC+2*KST; GR=50688; GST=28160; LDS=163840
assert RB+24576<=GR and GR+4*GST<=LDS
sWV,sX,sI,sR1,sC1,sQ,sB,sR2,sC2,sT0,sNT,sNC,sT = 3,4,5,6,7,8,9,10,11,12,13,14,15
pX,pLA,pAI,pCR,pCI,pDT,pDS = 16,18,20,22,24,26,28
pW1,pW2,pOUT,pDBG,pWS = 32,34,36,38,40
rWS,rX,rW1,rW2,rOUT,rH0,rH1,rDBG = 44,48,52,56,60,64,68,72
sBUD=76; sU=77; sV=78; sW=79; sST=80
sW4=42
nt_tab=[3,3,3,3,3,3,2,2,3,3,3,3,3,2,2,2]; t0_tab=[sum(nt_tab[:i]) for i in range(16)]
a = Asm()
uid=[0]
def L(n): uid[0]+=1; return f'L_{n}_{uid[0]}'
def stamp(i):
    if opt.instr: a(f's_memtime {s(sST+2*i,2)}\ns_waitcnt lgkmcnt(0)')
def srd(r, p, n, add=None):
    a(f's_mov_b32 s{r}, s{p}\ns_mov_b32 s{r+1}, s{p+1}\ns_mov_b32 s{r+2}, {n}\ns_mov_b32 s{r+3}, 0x20000')
def signal(addr):
    a(f's_mov_b64 exec, 1\nds_add_u32 v1, v2 offset:{addr}\ns_mov_b64 exec, -1')
def signal_v(vaddr):
    a(f's_mov_b64 exec, 1\nds_add_u32 v{vaddr}, v2\ns_mov_b64 exec, -1')
def budget(done):
    a(f's_cmp_eq_u32 s{sBUD}, 0\ns_cbranch_scc1 {done}\ns_sub_u32 s{sBUD}, s{sBUD}, 1')
def ldswait(addr, n, vt=3, vaddr=1):
    l=L('lw'); d=L('lwd')
    a(f'{l}:\nds_read_b32 v{vt}, v{vaddr} offset:{addr}\ns_waitcnt lgkmcnt(0)\nv_readfirstlane_b32 s{sT}, v{vt}\ns_nop 0\ns_cmp_ge_u32 s{sT}, {n}\ns_cbranch_scc1 {d}')
    budget(d); a(f's_branch {l}\n{d}:')
def nonce_wait(vn):
    l=L('nw'); d=L('nwd')
    a(f'{l}:\nv_readfirstlane_b32 s{sNC}, v{vn}\ns_nop 0\ns_cmp_lg_u32 s{sNC}, 0\ns_cbranch_scc1 {d}')
    budget(d)
    a(f's_sleep 1\nbuffer_load_dword v{vn}, v1, {s(rDBG,4)}, 0 offen sc1\ns_waitcnt vmcnt(0)\ns_branch {l}\n{d}:')
def flag_store(soff_sgpr, vt=3):
    a(f'v_mov_b32 v{vt}, s{sNC}\ns_mov_b64 exec, 1\nbuffer_store_dword v{vt}, v1, {s(rWS,4)}, s{soff_sgpr} offen sc1\ns_mov_b64 exec, -1')
def poll1(vaddr, soff, vt, need=None):
    l=L('p'); d=L('pd')
    a(f'{l}:\nbuffer_load_dword v{vt}, v{vaddr}, {s(rWS,4)}, s{soff} offen sc1\ns_waitcnt vmcnt(0)\nv_cmp_ne_u32 vcc, s{sNC}, v{vt}')
    if need is not None: a(f's_nop 0\ns_and_b64 vcc, vcc, {s(need,2)}')
    a(f's_cbranch_vccz {d}'); budget(d); a(f's_sleep {P("slp",1)}\ns_branch {l}\n{d}:')
def unpack(lo, hi, src):
    a(f'v_and_b32 v{hi}, 0xffff0000, v{src}' if hi!=src else f'v_lshlrev_b32 v{lo}, 16, v{src}')
    a(f'v_lshlrev_b32 v{lo}, 16, v{src}' if hi!=src else f'v_and_b32 v{hi}, 0xffff0000, v{src}')
def finish_stamps(n):
    if not opt.instr: return
    a(f's_getreg_b32 s{sT}, hwreg(HW_REG_XCC_ID)')
    a(f's_add_u32 s44, s{pWS}, {STAMP}\ns_addc_u32 s45, s{pWS+1}, 0\ns_mov_b32 s46, 0x100000\ns_mov_b32 s47, 0x20000')
    for i in range(10): a(f'v_mov_b32 v{4+i}, s{sST+2*i}')
    a(f'v_mov_b32 v14, s100\nv_mov_b32 v15, s{sT}')
    a(f's_lshl_b32 s{sU}, s2, 9\ns_lshl_b32 s{sV}, s{sWV}, 6\ns_add_u32 s{sU}, s{sU}, s{sV}\nv_mov_b32 v1, 0\ns_mov_b64 exec, 1')
    for i in range(3): a(f'buffer_store_dwordx4 {v(4+4*i,4)}, v1, s[44:47], s{sU} offen offset:{16*i}')

a(f'''s_cmp_ge_u32 s2, 256
s_cbranch_scc1 L_exit
s_load_dwordx16 s[16:31], s[0:1], 0
s_load_dwordx8 s[32:39], s[0:1], 64
s_load_dwordx2 s[40:41], s[0:1], 96
s_memrealtime s[100:101]''')
if opt.instr: a(f's_memtime {s(sST,2)}')
a(f'''v_lshrrev_b32 v3, 6, v0
v_and_b32 v0, 63, v0
v_readfirstlane_b32 s{sWV}, v3
v_mov_b32 v1, 0
v_mov_b32 v2, 1
s_mov_b32 s{sBUD}, 200000
s_and_b32 s{sX}, s2, 7
s_lshr_b32 s{sI}, s2, 3
s_lshr_b32 s{sT}, s{sX}, 1
s_lshl_b32 s{sT}, s{sT}, 2
s_and_b32 s{sU}, s{sI}, 3
s_add_u32 s{sR1}, s{sT}, s{sU}
s_lshl_b32 s{sT}, s{sX}, 2
s_add_u32 s{sR2}, s{sT}, s{sU}
s_lshr_b32 s{sC2}, s{sI}, 2
s_and_b32 s{sU}, s{sX}, 1
s_lshl_b32 s{sT}, s{sU}, 3
s_add_u32 s{sC1}, s{sT}, s{sC2}
s_lshl_b32 s{sT}, s{sR1}, 4
s_add_u32 s{sQ}, s{sT}, s{sC1}
s_lshl_b32 s{sT}, s{sX}, 5
s_add_u32 s{sB}, s{sT}, s{sI}
s_mul_i32 s{sT0}, s{sU}, 22
s_mul_i32 s{sT}, s{sC2}, 3
s_add_u32 s{sT0}, s{sT0}, s{sT}
s_sub_u32 s{sU}, 6, s{sU}
s_max_u32 s{sT}, s{sC2}, s{sU}
s_sub_u32 s{sT}, s{sT}, s{sU}
s_sub_u32 s{sT0}, s{sT0}, s{sT}
s_cmp_lt_u32 s{sC2}, s{sU}
s_cselect_b32 s{sNT}, 3, 2
s_and_b32 s{sW4}, s{sWV}, 3
s_waitcnt lgkmcnt(0)''')
srd(rWS,pWS,WS_REC); srd(rDBG,pDBG,256)
a(f's_cmp_ge_u32 s{sWV}, 4\ns_cbranch_scc1 L_S')

def gemm1(nt):
    vO=4; vN=5; vF=6; vP=7; vA=8
    XF=128; ACC=80; WF=44
    a.c(f'---- G: GEMM1 with {nt} column tiles')
    a(f'''v_lshrrev_b32 v{vO}, 2, v0
v_mul_u32_u24 v{vO}, 2752, v{vO}
v_and_b32 v3, 3, v0
v_lshl_add_u32 v{vO}, v3, 4, v{vO}
s_mul_i32 s{sU}, s{sW4}, {16*2752}
s_lshl_b32 s{sT}, s{sT0}, 6
s_add_u32 s{sU}, s{sU}, s{sT}
s_mul_i32 s{sV}, s{sW4}, 3072
s_add_u32 s{sV}, s{sV}, {GR}''')
    for j in range(8):
        for T in range(nt):
            a(f's_add_u32 m0, s{sV}, {j*4*3072+T*1024}\ns_add_u32 s{sT}, s{sU}, {j*4*16*2752+T*64}\nbuffer_load_dwordx4 v{vO}, {s(rW1,4)}, s{sT} offen lds')
    a('s_barrier')
    a(f'''v_and_b32 v3, 3, v0
v_bfe_u32 v{vP}, v0, 2, 2
v_lshlrev_b32 v{vP}, 10, v{vP}
v_lshl_add_u32 v{vP}, v3, 2, v{vP}
v_lshrrev_b32 v{vA}, 5, v0
v_lshlrev_b32 v{vA}, 9, v{vA}
v_bfe_u32 v9, v0, 2, 2
v_lshl_add_u32 v{vA}, v9, 6, v{vA}
v_bfe_u32 v9, v0, 4, 1
v_lshl_add_u32 v{vA}, v9, 5, v{vA}
v_lshl_add_u32 v{vA}, v3, 3, v{vA}
v_add_u32 v{vA}, {GR}, v{vA}
v_add_u32 v{vA+1}, 49152, v{vA}
v_lshlrev_b32 v{vO}, 4, v0
s_lshl_b32 s{sU}, s{sR1}, 6
s_lshl_b32 s{sT}, s{sW4}, 4
s_add_u32 s{sU}, s{sU}, s{sT}
s_add_u32 s{sU}, s{sU}, {FL_X}
s_waitcnt vmcnt(0)''')
    stamp(1)
    signal(C_W1)
    nonce_wait(vN)
    poll1(vP, sU, vF)
    stamp(2)
    a(f's_lshl_b32 s{sU}, s{sR1}, 2\ns_add_u32 s{sU}, s{sU}, s{sW4}\ns_lshl_b32 s{sU}, s{sU}, 15\ns_add_u32 s{sU}, s{sU}, {XNF}')
    for st in range(32):
        if st and st%4==0: a(f's_add_u32 s{sU}, s{sU}, 4096')
        a(f'buffer_load_dwordx4 {v(XF+4*st,4)}, v{vO}, {s(rWS,4)}, s{sU} offen offset:{1024*(st%4)} sc1')
    ldswait(C_W1,4)
    def rd(st,T):
        base = vA if st<16 else vA+1; off=(st%16)*3072+T*1024; d=WF+(st%3)*12+T*4
        return [f'ds_read_b64_tr_b16 {v(d,2)}, v{base} offset:{off}', f'ds_read_b64_tr_b16 {v(d+2,2)}, v{base} offset:{off+256}']
    for st in range(2):
        for T in range(nt):
            for x in rd(st,T): a(x)
    for st in range(32):
        a(f's_waitcnt vmcnt({31-st}) lgkmcnt({2*nt if st<31 else 0})')
        for T in range(nt):
            c = v(ACC+16*T,16) if st else '0'
            a(f'v_mfma_f32_32x32x16_bf16 {v(ACC+16*T,16)}, {v(WF+(st%3)*12+T*4,4)}, {v(XF+4*st,4)}, {c}')
            if st+2<32:
                for x in rd(st+2,T): a(x)
    signal(C_W1D)
    stamp(3)
    a(f'''s_lshl_b32 s{sU}, s{sR1}, 2
s_add_u32 s{sU}, s{sU}, s{sW4}
s_lshl_b32 s{sW}, s{sU}, 6
s_mul_i32 s{sU}, s{sU}, {HST}
s_lshl_b32 s{sT}, s{sT0}, 11
s_add_u32 s{sU}, s{sU}, s{sT}
s_add_u32 s{sU}, s{sU}, {H}
s_add_u32 s{sV}, s{sU}, 4096
s_lshl_b32 s{sT}, s{sC1}, 2
s_add_u32 s{sW}, s{sW}, s{sT}
s_add_u32 s{sW}, s{sW}, {FL_H}''')
    for T in range(nt):
        for hf in range(2):
            d = XF+(T*2+hf)*4
            for m in range(4):
                r = ACC+16*T+8*hf+2*m
                a(f'v_cvt_pk_bf16_f32 v{d+m}, v{r}, v{r+1}')
            for m in range(4): a(f'v_pk_max_i16 v{d+m}, v{d+m}, 0')
            off = 2048*T+1024*hf
            a(f'buffer_store_dwordx4 {v(d,4)}, v{vO}, {s(rWS,4)}, s{sU if off<4096 else sV} offen offset:{off%4096} sc1')

a(f'buffer_load_dword v5, v1, {s(rDBG,4)}, 0 offen sc1')
srd(rW1,pW1,512*1376*2)
a(f's_cmp_eq_u32 s{sNT}, 2\ns_cbranch_scc1 L_G2t')
gemm1(3)
a('s_branch L_G1done\nL_G2t:')
gemm1(2)
a('L_G1done:')
vO=4; vD=5; vF=6; vP=7; vW=8
ACC=192; PRE=120; WK=104; HB=16; NPRE=9; NSL=13; NHB=11
srd(rW2,pW2,1376*512*2)
a(f'''v_lshrrev_b32 v{vD}, 3, v0
v_lshlrev_b32 v{vD}, 10, v{vD}
v_bfe_u32 v3, v0, 4, 1
v_lshlrev_b32 v3, 2, v3
v_and_b32 v9, 7, v0
v_xor_b32 v3, v3, v9
v_lshl_add_u32 v{vD}, v3, 4, v{vD}
s_mul_i32 s{sU}, s{sW4}, {22*16*1024}
s_lshl_b32 s{sT}, s{sC2}, 7
s_add_u32 s{sU}, s{sU}, s{sT}
s_mul_i32 s{sV}, s{sW4}, {GST}
s_add_u32 s{sV}, s{sV}, {GR}''')
ldswait(C_W1D,4)
def w2dma(j,slot,hf):
    a(f's_add_u32 m0, s{sV}, {slot*2048+hf*1024}\ns_add_u32 s{sT}, s{sU}, {(16*j+8*hf)*1024}\nbuffer_load_dwordx4 v{vD}, {s(rW2,4)}, s{sT} offen lds')
NA=P('na',12)
for n in range(2*NSL):
    if n==NA:
        a(f's_waitcnt vmcnt({NA})'); flag_store(sW); stamp(4)
    w2dma(n//2,n//2,n%2)
a(f'''v_lshrrev_b32 v{vW}, 5, v0
v_lshlrev_b32 v{vW}, 9, v{vW}
v_bfe_u32 v3, v0, 2, 2
v_lshl_add_u32 v{vW}, v3, 7, v{vW}
v_bfe_u32 v3, v0, 3, 1
s_and_b32 s{sT}, s{sW4}, 1
v_xor_b32 v3, s{sT}, v3
v_lshl_add_u32 v{vW}, v3, 6, v{vW}
v_and_b32 v3, 1, v0
v_lshl_add_u32 v{vW}, v3, 5, v{vW}
v_bfe_u32 v3, v0, 4, 1
v_lshl_add_u32 v{vW}, v3, 4, v{vW}
v_bfe_u32 v3, v0, 1, 1
v_lshl_add_u32 v{vW}, v3, 3, v{vW}
v_xor_b32 v{vW+1}, 64, v{vW}
v_add_u32 v{vW}, s{sV}, v{vW}
v_add_u32 v{vW+1}, s{sV}, v{vW+1}''')
a(f'''s_lshr_b32 s{sT}, s{sW4}, 1
s_lshl_b32 s{sW}, s{sR2}, 1
s_add_u32 s{sW}, s{sW}, s{sT}
s_mul_i32 s{sT}, s{sW}, {HST}
s_add_u32 s{sT}, s{sT}, {H}
s_add_u32 s{rH0}, s{pWS}, s{sT}
s_addc_u32 s{rH0+1}, s{pWS+1}, 0
s_mov_b32 s{rH0+2}, {HST}
s_mov_b32 s{rH0+3}, 0x20000
s_xor_b32 s{sW}, s{sW}, 1
s_mul_i32 s{sT}, s{sW}, {HST}
s_add_u32 s{sT}, s{sT}, {H}
s_add_u32 s{rH1}, s{pWS}, s{sT}
s_addc_u32 s{rH1+1}, s{pWS+1}, 0
s_mov_b32 s{rH1+2}, {HST}
s_mov_b32 s{rH1+3}, 0x20000''')
def w2rd(d, slot):
    return [f'ds_read_b64_tr_b16 {v(d+4*aa+2*hf,2)}, v{vW+aa} offset:{slot*2048+hf*1024}' for aa in range(2) for hf in range(2)]
a(f's_waitcnt vmcnt({2*NSL-2*NPRE})')
for j in range(NPRE):
    if j>=3: a('s_waitcnt lgkmcnt(8)')
    for x in w2rd(PRE+8*j, j): a(x)
a('s_waitcnt lgkmcnt(0)')
for j in range(NSL,22):
    for hf in range(2): w2dma(j, j-NSL, hf)
masks=[]
for gw in range(4):
    m=0
    for C in range(16):
        if t0_tab[C]<=11*gw+10 and t0_tab[C]+nt_tab[C]-1>=11*gw: m|=1<<C
    masks.append(m)
a(f'''s_mov_b32 s{sW}, {masks[0]|masks[1]<<16}
s_cmp_ge_u32 s{sW4}, 2
s_cselect_b32 s{sW}, {masks[2]|masks[3]<<16}, s{sW}
s_and_b32 s{sT}, s{sW4}, 1
s_lshl_b32 s{sT}, s{sT}, 4
s_lshr_b32 s{sW}, s{sW}, s{sT}
s_and_b32 s{sW}, s{sW}, 0xffff
s_lshl_b32 s{sT}, s{sW}, 16
s_or_b32 s98, s{sW}, s{sT}
s_mov_b32 s99, 0
v_and_b32 v{vP}, 31, v0
v_lshlrev_b32 v{vP}, 2, v{vP}
s_lshl_b32 s{sW}, s{sR2}, 7
s_add_u32 s{sW}, s{sW}, {FL_H}''')
stamp(5)
poll1(vP, sW, vF, need=98)
stamp(6)
a(f's_mul_i32 s{sU}, s{sW4}, {22*1024}')
def hld(j):
    if j and j%4==0: a(f's_add_u32 s{sU}, s{sU}, 4096')
    for b in range(2):
        a(f'buffer_load_dwordx4 {v(HB+(j%NHB)*8+4*b,4)}, v{vO}, {s(rH0 if b==0 else rH1,4)}, s{sU} offen offset:{1024*(j%4)} sc1')
for j in range(NHB): hld(j)
def wreg(j): return PRE+8*j if j<NPRE else WK+8*(j%2)
def wslot(j): return j if j<NSL else j-NSL
srd(rOUT,pOUT,2048*512*2)
for x in w2rd(wreg(NPRE), wslot(NPRE)): a(x)
for j in range(22):
    vm = 2*NHB-2 if j<22-NHB else 42-2*j
    a(f's_waitcnt vmcnt({vm})' + (' lgkmcnt(0)' if j>=NPRE else ''))
    nxt = w2rd(wreg(j+1), wslot(j+1)) if (j+1>NPRE and j+1<22) else []
    order = [(1,0),(0,1),(1,1),(0,0)]
    for n,(aa,b) in enumerate(order):
        t = ACC+16*(aa+2*b); c = v(t,16) if j else '0'
        a(f'v_mfma_f32_32x32x16_bf16 {v(t,16)}, {v(wreg(j)+4*aa,4)}, {v(HB+(j%NHB)*8+4*b,4)}, {c}')
        if nxt: a(nxt[n])
    if j+NHB<22: hld(j+NHB)
stamp(7)
vR=5
a(f'v_add_u32 v{vR}, s{sV}, v{vO}')
for tau in (1,2,3):
    for q in range(4): a(f'ds_write_b128 v{vR}, {v(ACC+16*tau+4*q,4)} offset:{tau*4096+q*1024}')
for tau in (1,2,3):
    a(f's_xor_b32 s{sT}, s{sW4}, {tau}\ns_mul_i32 s{sT}, s{sT}, {GST}\ns_add_u32 s{sT}, s{sT}, {GR+tau*4096}\nv_add_u32 v{10+tau}, s{sT}, v{vO}')
a(f'''s_lshl_b32 s{sT}, s{sW4}, 12
s_add_u32 s{sT}, s{sT}, {KC}
v_add_u32 v10, s{sT}, v{vO}
v_and_b32 v3, 31, v0
v_lshlrev_b32 v3, 10, v3
v_lshrrev_b32 v9, 5, v0
v_lshl_add_u32 v9, v9, 5, v3
s_lshr_b32 s{sT}, s{sW4}, 1
s_lshl_b32 s{sU}, s{sR2}, 1
s_add_u32 s{sU}, s{sU}, s{sT}
s_lshl_b32 s{sU}, s{sU}, 15
s_lshl_b32 s{sT}, s{sC2}, 7
s_add_u32 s{sU}, s{sU}, s{sT}
s_and_b32 s{sT}, s{sW4}, 1
s_lshl_b32 s{sT}, s{sT}, 6
s_add_u32 s{sU}, s{sU}, s{sT}
s_waitcnt lgkmcnt(0)
s_barrier''')
stamp(8)
PB=16
for tau in (1,2,3):
    for q in range(4): a(f'ds_read_b128 {v(PB+16*tau+4*q,4)}, v{10+tau} offset:{q*1024}')
for tau in (1,2,3):
    a(f's_waitcnt lgkmcnt({8 if tau<3 else 4})')
    if tau==1:
        for q in range(4): a(f'ds_read_b128 {v(PB+4*q,4)}, v10 offset:{q*1024}')
    for m in range(8): a(f'v_pk_add_f32 {v(ACC+2*m,2)}, {v(ACC+2*m,2)}, {v(PB+16*tau+2*m,2)}')
for m in range(8): a(f'v_cvt_pk_bf16_f32 v{96+m}, v{ACC+2*m}, v{ACC+2*m+1}')
for m in range(8): unpack(ACC+2*m, ACC+2*m+1, 96+m)
a('s_waitcnt lgkmcnt(0)')
for m in range(8): a(f'v_pk_add_f32 {v(ACC+2*m,2)}, {v(ACC+2*m,2)}, {v(PB+2*m,2)}')
for m in range(8): a(f'v_cvt_pk_bf16_f32 v{96+m}, v{ACC+2*m}, v{ACC+2*m+1}')
for hf in range(2): a(f'buffer_store_dwordx4 {v(96+4*hf,4)}, v9, {s(rOUT,4)}, s{sU} offen offset:{16*hf}')
if opt.instr: a('s_waitcnt vmcnt(0)')
stamp(9)
finish_stamps(10)
a('s_endpgm')

a('L_S:')
sCH=90 if not opt.instr else 90
sCH,sSH,sD = 52,53,54
sXA,sKC = 56,57
vN=3
srd(rX,pX,2048*512*2)
a(f'''s_lshr_b32 s{sCH}, s{sW4}, 1
s_and_b32 s{sSH}, s{sW4}, 1
s_lshl_b32 s{sD}, s{sB}, 1
s_add_u32 s{sD}, s{sD}, s{sCH}
v_lshlrev_b32 v16, 4, v0
s_lshl_b32 s{sU}, s{sQ}, 13
s_lshl_b32 s{sT}, s{sW4}, 11
s_add_u32 s{sU}, s{sU}, s{sT}
buffer_load_dwordx4 v[4:7], v16, {s(rX,4)}, s{sU} offen
buffer_load_dwordx4 v[8:11], v16, {s(rX,4)}, s{sU} offen offset:1024
s_cmp_lg_u32 s2, 0
s_cbranch_scc1 L_nomaster
s_cmp_lg_u32 s{sW4}, 0
s_cbranch_scc1 L_nomaster
s_or_b32 s{sT}, s100, 1
v_mov_b32 v12, s{sT}
s_mov_b64 exec, 1
buffer_store_dword v12, v1, {s(rDBG,4)}, 0 offen sc1
s_mov_b64 exec, -1
L_nomaster:
s_lshl_b32 s{sT}, s{sD}, 8
s_lshl_b32 s{sU}, s{sSH}, 7
s_add_u32 s{sT}, s{sT}, s{sU}
v_lshl_add_u32 v17, v0, 1, s{sT}
s_lshl_b32 s{sT}, s{sB}, 2
v_mov_b32 v18, s{sT}
global_load_ushort v12, v17, {s(pLA,2)}
global_load_ushort v13, v17, {s(pAI,2)}
global_load_ushort v14, v17, {s(pCR,2)}
global_load_ushort v15, v17, {s(pCI,2)}
global_load_dword v19, v18, {s(pDT,2)}
global_load_dword v20, v18, {s(pDS,2)}
buffer_load_dword v21, v1, {s(rDBG,4)}, 0 offen sc1
s_mul_i32 s{sXA}, s{sCH}, {XST}
s_add_u32 s{sXA}, s{sXA}, {XA}
s_mul_i32 s{sKC}, s{sCH}, {KST}
s_add_u32 s{sKC}, s{sKC}, {KC}
s_lshl_b32 s{sT}, s{sSH}, 8
s_add_u32 s{sT}, s{sT}, s{sXA}
v_lshl_add_u32 v22, v0, 2, s{sT}
ds_write_b32 v22, v1
v_lshlrev_b32 v22, 1, v0
v_and_b32 v22, 0x7c, v22
ds_write_b32 v22, v1
s_waitcnt lgkmcnt(0)
s_barrier''')
a(f'''v_and_b32 v22, 31, v0
v_lshlrev_b32 v24, 3, v22
v_cvt_f32_u32 v24, v24
v_lshrrev_b32 v23, 3, v22
v_and_b32 v26, 3, v0
v_lshl_add_u32 v23, v23, 2, v26
v_bfe_u32 v26, v0, 2, 1
v_lshl_add_u32 v25, v26, 2, v23
v_lshl_add_u32 v27, v23, 1, v1
v_add_u32 v27, 246, v27
v_lshl_add_u32 v27, v26, 2, v27
v_cmp_lt_u32 vcc, 4, v23
v_cndmask_b32 v25, v25, v27, vcc
v_lshlrev_b32 v27, 2, v23
v_add_u32 v27, 480, v27
v_lshl_add_u32 v27, v26, 8, v27
v_cmp_lt_u32 vcc, 7, v23
v_cndmask_b32 v25, v25, v27, vcc
v_subrev_u32 v28, 11, v23
v_lshrrev_b32 v27, 1, v28
v_and_b32 v27, 3, v27
v_lshlrev_b32 v27, 8, v27
v_and_b32 v28, 1, v28
v_lshl_add_u32 v27, v28, 3, v27
v_lshl_add_u32 v27, v26, 9, v27
v_add_u32 v27, 1024, v27
v_cmp_lt_u32 vcc, 10, v23
v_cndmask_b32 v25, v25, v27, vcc
v_cvt_f32_u32 v25, v25''')
E=32; Dd=48
a('s_waitcnt vmcnt(7)')
stamp(1)
for m in range(4):
    unpack(E+4*m, E+4*m+2, 4+m); unpack(E+4*m+1, E+4*m+3, 8+m)
a(f'v_readfirstlane_b32 s58, v{E}\nv_readfirstlane_b32 s59, v{E+1}')
for e in range(8): a(f'v_pk_add_f32 {v(Dd+2*e,2)}, {v(E+2*e,2)}, s[58:59] neg_lo:[0,1] neg_hi:[0,1]')
a(f'v_pk_mul_f32 v[66:67], {v(Dd,2)}, {v(Dd,2)}\nv_pk_add_f32 v[64:65], {v(Dd,2)}, {v(Dd+2,2)}')
for e in range(1,8):
    a(f'v_pk_fma_f32 v[66:67], {v(Dd+2*e,2)}, {v(Dd+2*e,2)}, v[66:67]')
    if e>=2: a(f'v_pk_add_f32 v[64:65], v[64:65], {v(Dd+2*e,2)}')
a('''v_permlane32_swap_b32 v64, v65
v_permlane32_swap_b32 v66, v67
v_add_f32 v64, v64, v65
v_add_f32 v66, v66, v67
v_permlane16_swap_b32 v64, v66
v_add_f32 v64, v64, v66
v_add_f32_dpp v64, v64, v64 quad_perm:[1,0,3,2] row_mask:0xf bank_mask:0xf
v_add_f32_dpp v64, v64, v64 quad_perm:[2,3,0,1] row_mask:0xf bank_mask:0xf
v_add_f32_dpp v64, v64, v64 row_half_mirror row_mask:0xf bank_mask:0xf
v_add_f32_dpp v64, v64, v64 row_mirror row_mask:0xf bank_mask:0xf
v_readlane_b32 s60, v64, 0
v_readlane_b32 s61, v64, 32
v_readlane_b32 s62, v64, 16
v_readlane_b32 s63, v64, 48
v_mov_b32 v68, 0x3b000000
v_pk_mul_f32 v[64:65], s[60:61], v[68:69] op_sel_hi:[1,0]
v_pk_mul_f32 v[66:67], s[62:63], v[68:69] op_sel_hi:[1,0]
v_pk_fma_f32 v[66:67], v[64:65], v[64:65], v[66:67] neg_lo:[1,0,0] neg_hi:[1,0,0]
v_pk_add_f32 v[64:65], v[64:65], s[58:59]
v_max_f32 v66, 0, v66
v_max_f32 v67, 0, v67
v_cvt_pk_bf16_f32 v68, v64, v65
v_cvt_pk_bf16_f32 v69, v66, v67''')
unpack(64,65,68); unpack(66,67,69)
a('''v_add_f32 v66, 0x3727c5ac, v66
v_add_f32 v67, 0x3727c5ac, v67
v_cvt_pk_bf16_f32 v69, v66, v67''')
unpack(66,67,69)
a('v_sqrt_f32 v66, v66\nv_sqrt_f32 v67, v67\nv_cvt_pk_bf16_f32 v69, v66, v67')
unpack(66,67,69)
a('v_rcp_f32 v66, v66\nv_rcp_f32 v67, v67')
for e in range(8): a(f'v_pk_add_f32 {v(E+2*e,2)}, {v(E+2*e,2)}, v[64:65] neg_lo:[0,1] neg_hi:[0,1]')
for e in range(8): a(f'v_cvt_pk_bf16_f32 v{Dd+e}, v{E+2*e}, v{E+2*e+1}')
for e in range(8): unpack(E+2*e, E+2*e+1, Dd+e)
for e in range(8): a(f'v_pk_mul_f32 {v(E+2*e,2)}, {v(E+2*e,2)}, v[66:67]')
for e in range(8): a(f'v_cvt_pk_bf16_f32 v{Dd+e}, v{E+2*e+1}, v{E+2*e}')
for r in range(2):
    for m in range(4): a(f'v_cvt_pk_bf16_f32 v{Dd+8+4*r+m}, v{E+4*m+r}, v{E+4*m+2+r}')
a(f'''s_sub_u32 s{sT}, 3, s{sW4}
s_lshl_b32 s{sT}, s{sT}, 11
s_add_u32 s{sT}, s{sT}, {RB}
v_lshl_add_u32 v22, v0, 5, s{sT}
ds_write_b128 v22, {v(Dd,4)}
ds_write_b128 v22, {v(Dd+4,4)} offset:16
s_mul_i32 s{sT}, s{sW4}, 2080
s_add_u32 s{sT}, s{sT}, {RB+8192}
v_add_u32 v23, s{sT}, v16
ds_write_b128 v23, {v(Dd+8,4)}
ds_write_b128 v23, {v(Dd+12,4)} offset:1040
s_lshl_b32 s{sT}, s{sW4}, 8
s_add_u32 s{sT}, s{sT}, {RB}
v_lshl_add_u32 v22, v0, 2, s{sT}
v_and_b32 v26, 7, v0
v_mul_u32_u24 v23, 1040, v26
v_lshrrev_b32 v27, 3, v0
v_lshl_add_u32 v23, v27, 4, v23
s_add_u32 s{sT}, s{sT}, 8192
v_add_u32 v23, s{sT}, v23
v_lshlrev_b32 v27, 9, v27
v_lshl_add_u32 v27, v26, 4, v27
s_waitcnt lgkmcnt(0)''')
signal(C_LN)
a(f'''s_lshl_b32 s{sU}, s{sQ}, 13
s_lshl_b32 s{sT}, s{sW4}, 10
s_add_u32 s{sU}, s{sU}, s{sT}
s_add_u32 s{sU}, s{sU}, {XNT}
s_add_u32 s58, s{sU}, 4096
s_lshr_b32 s{sV}, s{sQ}, 2
s_lshl_b32 s{sV}, s{sV}, 15
s_and_b32 s{sT}, s{sQ}, 3
s_lshl_b32 s{sT}, s{sT}, 7
s_add_u32 s{sV}, s{sV}, s{sT}
s_lshl_b32 s{sT}, s{sW4}, 13
s_add_u32 s{sV}, s{sV}, s{sT}
s_add_u32 s{sV}, s{sV}, {XNF}
s_add_u32 s59, s{sV}, 4096''')
ldswait(C_LN,4)
a(f'''ds_read2st64_b32 v[32:33], v22 offset0:0 offset1:8
ds_read2st64_b32 v[34:35], v22 offset0:16 offset1:24
ds_read_b128 v[40:43], v23
ds_read2st64_b32 v[36:37], v22 offset0:4 offset1:12
ds_read2st64_b32 v[38:39], v22 offset0:20 offset1:28
ds_read_b128 v[44:47], v23 offset:128
s_waitcnt lgkmcnt(3)
buffer_store_dwordx4 v[40:43], v27, {s(rWS,4)}, s{sV} offen sc1
buffer_store_dwordx4 v[32:35], v16, {s(rWS,4)}, s{sU} offen sc1
s_waitcnt lgkmcnt(0)
buffer_store_dwordx4 v[44:47], v27, {s(rWS,4)}, s59 offen sc1
buffer_store_dwordx4 v[36:39], v16, {s(rWS,4)}, s58 offen sc1''')
stamp(2)
def expbf(d, x, t, e):
    a(f'''v_mul_f32 v{t}, 0x3fb8aa3b, v{x}
v_fma_f32 v{e}, v{x}, s60, -v{t}
v_fmac_f32 v{e}, 0x32a5705f, v{x}
v_exp_f32 v{d}, v{t}
v_mul_f32 v{e}, 0x3f317218, v{e}
v_fmac_f32 v{d}, v{d}, v{e}
v_cvt_pk_bf16_f32 v{d}, v{d}, v{d}
v_lshlrev_b32 v{d}, 16, v{d}''')
a(f'''s_waitcnt vmcnt(4)
s_mov_b32 s60, 0x3fb8aa3b
s_lshl_b32 s{sT}, s{sCH}, 4
v_lshrrev_b32 v19, s{sT}, v19
v_lshlrev_b32 v19, 16, v19
v_lshlrev_b32 v12, 16, v12
v_lshlrev_b32 v13, 16, v13
v_lshlrev_b32 v14, 16, v14
v_lshlrev_b32 v15, 16, v15''')
expbf(28,19,29,30); expbf(31,12,29,30)
a(f'''v_mul_f32 v12, v31, v28
v_mul_f32 v13, v13, v28
v_mul_f32 v14, v14, v28
v_mul_f32 v15, v15, v28
v_mul_f32 v12, 0xbfb8aa3b, v12
v_mul_f32 v13, 0x3e22f983, v13
v_add_f32 v14, v14, v14
v_add_f32 v15, v15, v15
s_lshl_b32 s{sT}, s{sSH}, 11
s_add_u32 s{sT}, s{sT}, s{sXA}
s_add_u32 s{sT}, s{sT}, 512
v_add_u32 v22, s{sT}, v16
ds_write_b128 v22, v[12:15]
v_lshrrev_b32 v22, 5, v0
v_lshl_add_u32 v22, v22, 6, s{sT}
s_lshl_b32 s{sW}, s{sW4}, 10
s_lshl_b32 s{sT}, s{sQ}, 2
s_add_u32 s{sW}, s{sW}, s{sT}
s_add_u32 s{sW}, s{sW}, {FL_X}
s_waitcnt lgkmcnt(0)''')
PP=32; TT=64; CS=80; WW=96; UF=104; VF=108; KA=112
def prd(st):
    for t in range(4): a(f'ds_read_b128 {v(PP+16*(st%2)+4*t,4)}, v22 offset:{128*st+16*t}')
prd(0)
for st in range(8):
    if st+1<8: prd(st+1)
    a(f's_waitcnt lgkmcnt({4 if st+1<8 else 0})')
    pp=PP+16*(st%2)
    ch=[(t,u) for t in range(4) for u in range(2)]
    for n,(t,u) in enumerate(ch):
        a(f'v_pk_mul_f32 {v(TT+2*n,2)}, v[24:25], {v(pp+4*t,2)} op_sel:[{u},0] op_sel_hi:[{u},1]')
    for n in range(8): a(f'v_fract_f32 v{TT+2*n+1}, v{TT+2*n+1}')
    for n in range(8): a(f'v_exp_f32 v{TT+2*n}, v{TT+2*n}')
    for n in range(8): a(f'v_cos_f32 v{CS+2*n+(n&1)}, v{TT+2*n+1}')
    for n in range(8): a(f'v_sin_f32 v{CS+2*n+1-(n&1)}, v{TT+2*n+1}')
    for n in range(8): a(f'v_pk_mul_f32 {v(CS+2*n,2)}, {v(CS+2*n,2)}, {v(TT+2*n,2)} op_sel_hi:[1,0]')
    for t in range(4): a(f'v_pk_mul_f32 {v(WW+2*t,2)}, {v(CS+4*t+2,2)}, {v(pp+4*t+2,2)} op_sel:[1,0] op_sel_hi:[1,1] neg_hi:[0,1]')
    for t in range(4): a(f'v_cvt_pk_bf16_f32 v{VF+t}, v{CS+4*t}, v{CS+4*t+1}')
    for t in range(4): a(f'v_pk_fma_f32 {v(WW+2*t,2)}, {v(pp+4*t+2,2)}, {v(CS+4*t+2,2)}, {v(WW+2*t,2)} op_sel:[1,0,0] op_sel_hi:[0,0,1] neg_lo:[1,0,0] neg_hi:[1,0,0]')
    for t in range(4): a(f'v_cvt_pk_bf16_f32 v{UF+t}, v{WW+2*t}, v{WW+2*t+1}')
    a(f'v_mfma_f32_32x32x16_bf16 {v(KA,16)}, {v(UF,4)}, {v(VF,4)}, {v(KA,16) if st else "0"}')
    if st==P('fst',2):
        a('s_waitcnt vmcnt(0)'); nonce_wait(21); flag_store(sW); stamp(3)
stamp(4)
XT=240
a(f'''v_and_b32 v26, 31, v0
v_lshlrev_b32 v27, 10, v26
v_lshrrev_b32 v28, 5, v0
v_lshl_add_u32 v27, v28, 5, v27
s_lshr_b32 s{sT}, s{sW4}, 1
s_lshl_b32 s{sU}, s{sR2}, 1
s_add_u32 s58, s{sU}, s{sT}
s_lshl_b32 s{sU}, s58, 15
s_lshl_b32 s{sT}, s{sC2}, 7
s_add_u32 s{sU}, s{sU}, s{sT}
s_and_b32 s59, s{sW4}, 1
s_lshl_b32 s{sT}, s59, 6
s_add_u32 s{sU}, s{sU}, s{sT}
buffer_load_dwordx4 {v(XT,4)}, v27, {s(rX,4)}, s{sU} offen
buffer_load_dwordx4 {v(XT+4,4)}, v27, {s(rX,4)}, s{sU} offen offset:16''')
a(f'''s_xor_b32 s{sT}, s{sSH}, 1
s_mul_i32 s{sT}, s{sT}, {KCO}
s_add_u32 s{sT}, s{sT}, s{sKC}
v_add_u32 v22, s{sT}, v16
s_mul_i32 s{sT}, s{sSH}, {KCO}
s_add_u32 s62, s{sT}, s{sKC}
v_add_u32 v23, s62, v16
s_lshl_b32 s{sT}, s{sCH}, 2
v_mov_b32 v29, s{sT}''')
for q in range(4): a(f'ds_write_b128 v22, {v(KA+4*q,4)} offset:{q*1024}')
a('s_waitcnt lgkmcnt(0)')
a(f's_mov_b64 exec, 1\nds_add_u32 v29, v2 offset:{C_K1}\ns_mov_b64 exec, -1')
l=L('px'); d=L('pxd')
a(f'''s_and_b32 s{sU}, s{sX}, 3
s_lshl_b32 s{sU}, s{sU}, 10
s_add_u32 s{sU}, s{sU}, {FL_X}
{l}:
buffer_load_dwordx4 v[32:35], v16, {s(rWS,4)}, s{sU} offen sc1
s_waitcnt vmcnt(0)
v_xor_b32 v32, s{sNC}, v32
v_xor_b32 v33, s{sNC}, v33
v_xor_b32 v34, s{sNC}, v34
v_xor_b32 v35, s{sNC}, v35
v_or3_b32 v32, v32, v33, v34
v_or_b32 v32, v32, v35
v_cmp_ne_u32 vcc, 0, v32
s_cbranch_vccz {d}''')
budget(d); a(f's_sleep {P("slp",1)}\ns_branch {l}\n{d}:')
stamp(5)
a(f'''v_lshlrev_b32 v30, 13, v0
s_lshl_b32 s{sU}, s{sSH}, 20
s_lshl_b32 s{sT}, s{sD}, 4
s_add_u32 s{sU}, s{sU}, s{sT}
s_add_u32 s{sU}, s{sU}, {XNT}
s_lshl_b32 s{sT}, s{sSH}, 11
s_add_u32 s{sT}, s{sT}, s{sXA}
s_add_u32 m0, s{sT}, 512
s_add_u32 s{sV}, s{sU}, {64*8192}
buffer_load_dwordx4 v30, {s(rWS,4)}, s{sU} offen sc1 lds
s_add_u32 m0, m0, 1024
s_nop 0
buffer_load_dwordx4 v30, {s(rWS,4)}, s{sV} offen sc1 lds''')
ldswait(C_K1,2,vt=3,vaddr=29)
for q in range(4): a(f'ds_read_b128 {v(32+4*q,4)}, v23 offset:{q*1024}')
a(f'''v_and_b32 v26, 31, v0
v_lshlrev_b32 v26, 4, v26
v_lshrrev_b32 v27, 5, v0
s_add_u32 s{sT}, s62, 32
v_add_u32 v26, s{sT}, v26
v_lshl_add_u32 v28, v27, 3, v26
v_lshl_add_u32 v31, v27, 9, v26
v_lshl_add_u32 v26, v27, 10, v26
v_and_b32 v27, 1, v0
v_cmp_eq_u32 vcc, 0, v27
v_lshl_add_u32 v27, v0, 2, s62
s_waitcnt lgkmcnt(0)''')
for m in range(8): a(f'v_pk_add_f32 {v(KA+2*m,2)}, {v(KA+2*m,2)}, {v(32+2*m,2)}')
k=lambda r: KA+r
a(f'v_cndmask_b32 v48, v{k(12)}, v{k(11)}, vcc\nv_cndmask_b32 v49, v{k(14)}, v{k(13)}, vcc')
def pk(d,x,y): a(f'v_cvt_pk_bf16_f32 v{d}, v{x}, v{y}')
a(f's_cmp_eq_u32 s{sSH}, 1\ns_cbranch_scc1 L_odd')
def xwrites():
    a(f'''ds_write_b64 v28, v[32:33]
ds_write_b64 v28, v[34:35] offset:512
ds_write_b128 v31, v[36:39] offset:1024
ds_write_b128 v26, v[40:43] offset:2048
ds_write_b128 v26, v[44:47] offset:2560''')
pk(32,k(0),k(1)); pk(33,k(2),k(3)); pk(34,k(5),k(5)); pk(35,k(6),k(7))
pk(36,k(8),k(8)); pk(37,k(8),k(9)); pk(38,k(9),k(9)); pk(39,k(10),k(10))
for d,x,y,m in ((40,k(11),k(12),48),(44,k(13),k(14),49)):
    pk(d,x,x); pk(d+1,x,x); pk(d+2,m,y); pk(d+3,y,y)
a('v_mov_b32 v50, 0')
a('s_branch L_evdone\nL_odd:')
pk(32,k(1),k(2)); pk(33,k(3),k(4)); pk(34,k(5),k(6)); pk(35,k(7),k(7))
pk(36,k(8),k(8)); pk(37,k(9),k(9)); pk(38,k(9),k(10)); pk(39,k(10),k(10))
for d,x,y,m in ((40,k(11),k(12),48),(44,k(13),k(14),49)):
    pk(d,x,x); pk(d+1,x,m); pk(d+2,y,y); pk(d+3,y,y)
a(f'''v_cvt_pk_bf16_f32 v51, v1, v{k(0)}
v_mov_b32 v50, 0
v_readlane_b32 s{sT}, v51, 0
v_writelane_b32 v50, s{sT}, 7
L_evdone:''')
xwrites()
a(f'''s_mov_b64 exec, 0xff
ds_write_b32 v27, v50
s_mov_b64 exec, -1''')
vAB=4; vB=8
a(f'''v_and_b32 v26, 15, v0
v_lshrrev_b32 v27, 4, v0
v_lshlrev_b32 v28, 3, v27
v_sub_u32 v28, v26, v28
v_add_u32 v28, 25, v28
v_lshrrev_b32 v28, 1, v28
v_and_b32 v31, 1, v0
v_xor_b32 v31, 1, v31
v_mul_u32_u24 v31, {KCO}, v31
v_lshl_add_u32 v28, v28, 2, v31
s_lshl_b32 s{sT}, s{sSH}, 8
s_add_u32 s{sU}, s{sT}, s{sKC}
v_add_u32 v{vAB}, s{sU}, v28
v_add_u32 v{vAB+1}, 1024, v{vAB}
v_add_u32 v{vAB+2}, 2048, v{vAB}
v_add_u32 v{vAB+3}, 3072, v{vAB}
v_lshlrev_b32 v9, 4, v27
v_lshl_add_u32 v28, v26, 5, v9
s_sub_u32 s{sU}, s{sXA}, s{sT}
s_add_u32 s{sU}, s{sU}, {480-192}
v_add_u32 v{vB}, s{sU}, v28
v_lshl_add_u32 v9, v26, 6, v9
v_lshrrev_b32 v28, 1, v27
v_lshlrev_b32 v28, 4, v28
v_lshl_add_u32 v28, v26, 5, v28
v_and_b32 v27, 1, v27
v_xor_b32 v27, 1, v27
v_lshl_add_u32 v28, v27, 3, v28
s_lshl_b32 s{sT}, s{sW4}, 10
s_add_u32 s{sT}, s{sT}, {XA+512}
v_add_u32 v10, s{sT}, v28
s_waitcnt vmcnt(0) lgkmcnt(0)''')
signal(C_K2)
ldswait(C_K2,4)
stamp(6)
FA=[32,96]; AC=160; XD=192; XU=208
def crd(rp):
    fa=FA[rp%2]; out=[]
    for u in range(8):
        o=16*rp+128*(u&1)
        out.append(f'ds_read_b128 {v(fa+32+4*u,4)}, v{vB} offset:{512*u+64*(3-rp)}')
        out.append(f'ds_read2_b32 {v(fa+4*u,2)}, v{vAB+(u>>1)} offset0:{o} offset1:{o+1}')
        out.append(f'ds_read2_b32 {v(fa+4*u+2,2)}, v{vAB+(u>>1)} offset0:{o+2} offset1:{o+3}')
    return out
for c in range(2):
    for tt in range(2): a(f'ds_read_b64 {v(XU+4*c+2*tt,2)}, v10 offset:{c*XST+512*tt}')
first=crd(0)
for x in first[:9]: a(x)
a('s_waitcnt lgkmcnt(9)')
unpack(216,217,20)
extra=[]
for c in range(2):
    for tt in range(2):
        b=XD+8*c+4*tt; r=XU+4*c+2*tt
        extra += [f'v_lshlrev_b32 v{b+3}, 16, v{r}', f'v_and_b32 v{b+2}, 0xffff0000, v{r}', f'v_lshlrev_b32 v{b+1}, 16, v{r+1}', f'v_and_b32 v{b}, 0xffff0000, v{r+1}']
        extra += [f'v_pk_mul_f32 {v(b+2*h,2)}, v[216:217], {v(b+2*h,2)} op_sel:[{c},0] op_sel_hi:[{c},1]' for h in range(2)]
        extra += [f'v_cvt_pk_bf16_f32 v{r+h}, v{b+2*h}, v{b+2*h+1}' for h in range(2)]
        for h in range(2): extra += [f'v_lshlrev_b32 v{b+2*h}, 16, v{r+h}', f'v_and_b32 v{b+2*h+1}, 0xffff0000, v{r+h}']
for m in range(8): extra += [f'v_lshlrev_b32 v{224+2*m}, 16, v{XT+m}', f'v_and_b32 v{225+2*m}, 0xffff0000, v{XT+m}']
for n,x in enumerate(first[9:]):
    if n>=6 and n%3==0: a('s_waitcnt lgkmcnt(12)')
    a(x)
for rp in range(4):
    fa=FA[rp%2]; nxt = crd(rp+1) if rp<3 else []
    a('s_waitcnt lgkmcnt(0)')
    n=0
    for u in range(8):
        for t in range(u,8):
            c = v(AC+4*t,4) if (rp or u) else '0'
            a(f'v_mfma_f32_16x16x32_bf16 {v(AC+4*t,4)}, {v(fa+4*u,4)}, {v(fa+32+4*(t-u),4)}, {c}')
            if nxt and n%3!=2: a(nxt.pop(0))
            elif extra: a(extra.pop(0))
            n+=1
    assert not nxt
for x in extra: a(x)
stamp(7)
for w in range(4):
    if w<3: a(f's_cmp_lg_u32 s{sW4}, {w}\ns_cbranch_scc1 L_cx{w+1}')
    for kap in (1,2,3):
        wd=w^kap
        for tt in range(2): a(f'ds_write_b128 v16, {v(AC+4*(2*wd+tt),4)} offset:{RB+((wd*3+kap-1)*2+tt)*1024}')
    for m in range(8): a(f'v_mov_b32 v{32+m}, v{AC+8*w+m}')
    if w<3: a(f's_branch L_cxd\nL_cx{w+1}:')
a(f'''L_cxd:
s_mul_i32 s{sT}, s{sW4}, 6144
s_add_u32 s{sT}, s{sT}, {RB}
v_add_u32 v22, s{sT}, v16
s_lshl_b32 s{sU}, s{sB}, 13
s_lshl_b32 s{sT}, s{sW4}, 11
s_add_u32 s{sU}, s{sU}, s{sT}
s_add_u32 s{sU}, s{sU}, {A2}
s_lshl_b32 s{sW}, s{sW4}, 10
s_lshl_b32 s{sT}, s{sB}, 2
s_add_u32 s{sW}, s{sW}, s{sT}
s_add_u32 s{sW}, s{sW}, {FL_A}
s_waitcnt lgkmcnt(0)''')
signal(C_CV)
ldswait(C_CV,4)
for n in range(6): a(f'ds_read_b128 {v(40+4*n,4)}, v22 offset:{n*1024}')
a('s_waitcnt lgkmcnt(4)')
for m in range(4): a(f'v_pk_add_f32 {v(32+2*m,2)}, {v(32+2*m,2)}, {v(40+2*m,2)}')
a('s_waitcnt lgkmcnt(0)')
for m in range(4): a(f'v_pk_add_f32 {v(40+2*m,2)}, {v(48+2*m,2)}, {v(56+2*m,2)}')
for m in range(8): pk(48+m, 32+2*m, 33+2*m)
for m in range(8): unpack(32+2*m, 33+2*m, 48+m)
def afin(own):
    for c in range(2):
        y = 32 if c==own else 40
        for m in range(4): a(f'v_pk_add_f32 {v(y+2*m,2)}, {v(y+2*m,2)}, {v(XD+8*c+2*m,2)}')
    y0,y1 = (32,40) if own==0 else (40,32)
    for m in range(8): pk(48+m, y0+m, y1+m)
a(f's_cmp_eq_u32 s{sCH}, 1\ns_cbranch_scc1 L_af1')
afin(0); a('s_branch L_afd\nL_af1:'); afin(1); a('L_afd:')
for tt in range(2): a(f'buffer_store_dwordx4 {v(48+4*tt,4)}, v9, {s(rWS,4)}, s{sU} offen offset:{1024*tt} sc1')
a(f'''v_and_b32 v26, 31, v0
v_lshlrev_b32 v26, 2, v26
v_lshrrev_b32 v27, 5, v0
v_lshl_add_u32 v27, v27, 16, v26
s_lshr_b32 s{sT}, s{sR2}, 3
s_lshl_b32 s{sV}, s{sT}, 10
s_lshl_b32 s{sT}, s{sC2}, 7
s_add_u32 s{sV}, s{sV}, s{sT}
s_add_u32 s{sV}, s{sV}, {FL_A}
s_lshl_b32 s{sU}, s{sC2}, 18
s_lshl_b32 s{sT}, s59, 17
s_add_u32 s{sU}, s{sU}, s{sT}
s_lshl_b32 s{sT}, s58, 7
s_add_u32 s{sU}, s{sU}, s{sT}
s_add_u32 s{sU}, s{sU}, {A2}
s_lshl_b32 s{sT}, s{sW4}, 12
s_add_u32 s{sT}, s{sT}, {KC}
v_add_u32 v22, s{sT}, v16
s_waitcnt vmcnt(0)''')
flag_store(sW)
stamp(8)
poll1(26, sV, 3)
for r in range(8):
    a(f'buffer_load_dword v{32+r}, v27, {s(rWS,4)}, s{sU} offen sc1')
    if r<7: a(f's_add_u32 s{sU}, s{sU}, 8192')
for r in range(8):
    a(f's_waitcnt vmcnt({7-r})'); unpack(40+2*r, 41+2*r, 32+r)
    a(f'v_pk_add_f32 {v(40+2*r,2)}, {v(40+2*r,2)}, {v(224+2*r,2)}')
for r in range(8): pk(32+r, 40+2*r, 41+2*r)
for r in range(8): unpack(40+2*r, 41+2*r, 32+r)
for q in range(4): a(f'ds_write_b128 v22, {v(40+4*q,4)} offset:{q*1024}')
a('s_waitcnt lgkmcnt(0)')
stamp(9)
a('s_barrier')
finish_stamps(10)
a('L_exit:\ns_endpgm')
K=NAME+'_kernel'
hdrc = ['; fused layernorm + S4D long convolution + ReLU MLP, one launch (generated by a script of mine)', f'; @launch grid=(256,1,1) block=(512,1,1) lds={LDS}']
open(opt.out,'w').write(kernel_file(hdrc, [(K, a.text(), 256, 256, 102)]))
print('instructions', a.ninst, 'nop states', a.nnop, file=sys.stderr)
```
